```python
import torch

def _softmax(x, axis=-1):
    return torch.softmax(x, dim=axis)

def _gelu(x):
    return torch.nn.functional.gelu(x, approximate='tanh')

def _silu(x):
    return torch.nn.functional.silu(x)

def _sigmoid(x):
    return torch.sigmoid(x)

def _layernorm(x, axis=-1, eps=1e-05):
    m = x.mean(dim=axis, keepdim=True)
    v = x.var(dim=axis, keepdim=True, unbiased=False)
    return (x - m) / torch.sqrt(v + eps)

def _scatter_add(tgt, idx, src, axis=0):
    return tgt.clone().index_add_(axis, idx, src)

def _segment_sum(src, seg, n):
    out = torch.zeros((n,) + src.shape[1:], dtype=src.dtype)
    return out.index_add_(0, seg, src)

def _pad(x, pw):
    flat = tuple((v for pair in reversed(pw) for v in pair))
    return torch.nn.functional.pad(x, flat)
kernel_name = 'standalone__swin_window_attn__vision'

def setup_inputs():

    _w = lambda a: (lambda t: t.to(torch.bfloat16) if t.is_floating_point() else t)(torch.as_tensor(a))
    H = W = 384 // 8 * 8
    C, win = (192, 8)
    return {'x': _w((lambda *s: torch.randn(*s, dtype=torch.bfloat16) * 0.2)(1, H, W, C)), 'wqkv': _w((lambda *s: torch.randn(*s, dtype=torch.bfloat16) * 0.2)(C, 3 * C)), 'wo': _w((lambda *s: torch.randn(*s, dtype=torch.bfloat16) * 0.05)(C, C))}

def reference(x, wqkv, wo):
    B, H, W, C = x.shape
    win = 8
    nh, nw = (H // win, W // win)
    xw = (lambda x, *d: x.permute(*d))(x.reshape(B, nh, win, nw, win, C), 0, 1, 3, 2, 4, 5)
    xw = xw.reshape(B * nh * nw, win * win, C)
    qkv = xw @ wqkv
    q, k, v = (qkv[..., :C].clone(), qkv[..., C:2 * C].clone(), qkv[..., 2 * C:].clone())
    scale = C ** (-0.5)
    p = _softmax(torch.einsum('bqc,bkc->bqk', q, k) * scale, axis=-1)
    o = torch.einsum('bqk,bkc->bqc', p, v) @ wo
    o = (lambda x, *d: x.permute(*d))(o.reshape(B, nh, nw, win, win, C), 0, 1, 3, 2, 4, 5)
    return o.reshape(B, H, W, C)
```

```python
import re

def regs(spec):
    m = re.fullmatch(r'([vas])\[(\d+):(\d+)\]', spec)
    if m:
        return [f'{m.group(1)}{k}' for k in range(int(m.group(2)), int(m.group(3)) + 1)]
    return [spec]

def R(kind, base, n=1):
    return f'{kind}{base}' if n == 1 else f'{kind}[{base}:{base+n-1}]'

class Ins:
    __slots__ = ('text', 'kind', 'rd', 'wr', 'srcc', 'note')
    def __init__(self, text, kind, rd=(), wr=(), srcc=(), note=''):
        self.text = text; self.kind = kind
        self.rd = [r for s in rd for r in regs(s)]
        self.wr = [r for s in wr for r in regs(s)]
        self.srcc = [r for s in srcc for r in regs(s)]
        self.note = note
    def __repr__(self): return self.text

def is_reg(s):
    return isinstance(s, str) and re.fullmatch(r'[vas](\d+|\[\d+:\d+\])|m0|vcc|exec', s) is not None

def mfma(d, a, b, c=None):
    cs = c if c is not None else '0'
    rd = [a, b] + ([c] if c is not None else [])
    return Ins(f'v_mfma_f32_16x16x32_bf16 {d}, {a}, {b}, {cs}', 'mfma', rd, [d], srcc=([c] if c is not None else []))
def valu(op, d, *src, kind='valu'):
    rd = [s.lstrip('-') for s in src if is_reg(str(s).lstrip('-'))]
    return Ins(f'{op} {d}, ' + ', '.join(str(s) for s in src), kind, rd, [d])
def trans(op, d, s): return valu(op, d, s, kind='trans')
def permswap(op, a, b): return Ins(f'{op} {a}, {b}', 'perm', [a, b], [a, b])
def salu(op, d, *src):
    rd = [s for s in src if is_reg(str(s))]
    return Ins(f'{op} {d}, ' + ', '.join(str(s) for s in src), 'salu', rd, [d])
def sraw(text, rd=(), wr=()): return Ins(text, 'salu', rd, wr)
def ds_read(d, addr, off, n=4):
    op = {4: 'ds_read_b128', 2: 'ds_read_b64', 1: 'ds_read_b32'}[n]
    assert 0 <= off < 65536
    return Ins(f'{op} {d}, {addr} offset:{off}', 'dsr', [addr], [d])
def ds_write(addr, s, off, n=4):
    op = {4: 'ds_write_b128', 2: 'ds_write_b64', 1: 'ds_write_b32'}[n]
    assert 0 <= off < 65536
    return Ins(f'{op} {addr}, {s} offset:{off}', 'dsw', [addr, s], [])
def bload(d, voff, srd, soff, off, op='buffer_load_dwordx4', flags=''):
    assert 0 <= off < 4096
    rd = [voff, srd] + ([soff] if is_reg(str(soff)) else [])
    return Ins(f'{op} {d}, {voff}, {srd}, {soff} offen offset:{off}{flags}', 'vml', rd, [d])
def bdma(voff, srd, soff, off, flags=''):
    assert 0 <= off < 4096
    rd = [voff, srd, 'm0'] + ([soff] if is_reg(str(soff)) else [])
    return Ins(f'buffer_load_dwordx4 {voff}, {srd}, {soff} offen offset:{off}{flags} lds', 'dma', rd, [])
def bstore(s, voff, srd, soff, off, op='buffer_store_dwordx4', flags=''):
    assert 0 <= off < 4096
    rd = [s, voff, srd] + ([soff] if is_reg(str(soff)) else [])
    return Ins(f'{op} {s}, {voff}, {srd}, {soff} offen offset:{off}{flags}', 'vms', rd, [], note=s)
def wait(vm=None, lgkm=None):
    t = 's_waitcnt'
    if vm is not None: t += f' vmcnt({vm})'
    if lgkm is not None: t += f' lgkmcnt({lgkm})'
    i = Ins(t, 'wait'); i.note = (vm, lgkm); return i
def barrier(): return Ins('s_barrier', 'barrier')
def label(n): return Ins(f'{n}:', 'label')
def nop(n):
    i = Ins(f's_nop {n}', 'nop'); i.note = n; return i
def comment(t): return Ins(f'; {t}', 'comment')

VALU_KINDS = ('valu', 'trans', 'perm')

def finalize(seq, mfma_pass_wait=8, mfma_war_c=3):
    out = []
    pos = 0
    last_w = {}
    last_srcc = {}
    last_store = {}
    lgkm_q = []
    vm_q = []
    def emit(i):
        nonlocal pos
        out.append(i)
        if i.kind in ('label', 'comment'): return
        pos += (i.note + 1) if i.kind == 'nop' else 1
    for ins in seq:
        k = ins.kind
        if k in ('label', 'comment'):
            emit(ins); continue
        if k == 'wait':
            vm, lg = ins.note
            if vm is not None: del vm_q[:max(0, len(vm_q) - vm)]
            if lg is not None: del lgkm_q[:max(0, len(lgkm_q) - lg)]
            emit(ins); continue
        touched = set(ins.rd) | set(ins.wr)
        need_l = None
        for idx, d in enumerate(lgkm_q):
            if touched & set(d): need_l = len(lgkm_q) - 1 - idx
        need_v = None
        for idx, d in enumerate(vm_q):
            if touched & set(d): need_v = len(vm_q) - 1 - idx
        if need_l is not None or need_v is not None:
            if need_l is not None: need_l = min(need_l, 14)
            if need_v is not None: need_v = min(need_v, 62)
            w = wait(need_v, need_l)
            if need_v is not None: del vm_q[:max(0, len(vm_q) - need_v)]
            if need_l is not None: del lgkm_q[:max(0, len(lgkm_q) - need_l)]
            emit(w)
        req = 0
        for r in ins.rd:
            if r not in last_w: continue
            wk, wp = last_w[r]
            d = 0
            if wk == 'mfma':
                if k == 'mfma' and r in ins.srcc and ins.srcc == ins.wr: d = 0
                else: d = mfma_pass_wait
            elif wk in VALU_KINDS:
                if k == 'mfma': d = 2
                elif k == 'perm': d = 2
                elif wk == 'trans' and k in VALU_KINDS: d = 1
                elif r[0] == 's' and k in ('vml', 'dma', 'vms'): d = 5
                elif r[0] == 's' and k in VALU_KINDS: d = 2
                elif ins.text.startswith('v_readfirstlane') or ins.text.startswith('v_readlane'): d = 1
            elif wk == 'salu':
                if r == 'm0' and k == 'dma': d = 1
            req = max(req, wp + 1 + d)
        for r in ins.wr:
            if r in last_w:
                wk, wp = last_w[r]
                if wk == 'mfma' and k != 'mfma': req = max(req, wp + 1 + mfma_pass_wait)
                if wk == 'mfma' and k == 'mfma' and not (ins.srcc == ins.wr and r in ins.srcc):
                    req = max(req, wp + 1 + mfma_pass_wait)
            if r in last_srcc and k in VALU_KINDS: req = max(req, last_srcc[r] + 1 + mfma_war_c)
            if r in last_store: req = max(req, last_store[r] + 1 + 2)
        if req > pos:
            n = req - pos
            while n > 0:
                c = min(n, 16); emit(nop(c - 1)); n -= c
        p = pos
        emit(ins)
        for r in ins.wr: last_w[r] = (k, p)
        if k == 'mfma':
            for r in ins.srcc: last_srcc[r] = p
        if k == 'vms':
            for r in regs(ins.note): last_store[r] = p
        if k == 'dsr': lgkm_q.append(list(ins.wr))
        if k == 'dsw': lgkm_q.append([])
        if k == 'vml': vm_q.append(list(ins.wr))
        if k in ('dma', 'vms'): vm_q.append([])
    return out

def render(seq):
    lines = []
    for i in seq:
        if i.kind == 'label': lines.append(i.text)
        else: lines.append('    ' + i.text)
    return '\n'.join(lines) + '\n'

def merge(mfmas, fillers, per=2):
    out = []
    streams = [list(l) for l in fillers]
    def pull(k, n):
        cnt = 0
        for st in streams:
            while st and st[0][0] <= k and cnt < n:
                out.append(st.pop(0)[1]); cnt += 1
            if cnt >= n: break
    def force(k):
        for st in streams:
            last = -1
            for j, it in enumerate(st):
                if it[2] <= k: last = j
            for _ in range(last + 1):
                it = st.pop(0)
                assert it[0] < k, ('deadline before earliest', it[1].text, it[0], k)
                out.append(it[1])
    pull(-1, 1000)
    for k, m in enumerate(mfmas):
        force(k)
        out.append(m)
        pull(k, per)
    pull(10**9, 10**9)
    return out
```

```python
import struct, math, sys
from asmlib import *

KN = 'standalone__swin_window_attn__vision'
XBYTES = 56623104
ROWB = 147456
SC = (192 ** -0.5) * math.log2(math.e)
SC_HEX = '0x%08x' % struct.unpack('<I', struct.pack('<f', SC))[0]

for r in range(72): assert (r * 43) >> 8 == r // 6
for r in range(12): assert (r * 11) >> 5 == r // 3
for r in range(2304 + 1024 + 64): assert (r * 43691) >> 21 == r // 48
for r in range(192): assert (r * 171) >> 12 == r // 24

def tau_to_wct(tau):
    w = tau // 3; pos = tau % 3
    return w, (pos if w % 2 == 0 else (pos + 2) % 3)

def gen_fold():
    L = []
    A = L.append
    A(sraw('s_cmp_ge_u32 s2, 144'))
    A(sraw('s_cbranch_scc1 L_fold_done'))
    A(sraw('s_load_dwordx4 s[4:7], s[0:1], 8'))
    A(sraw('s_load_dwordx2 s[8:9], s[0:1], 40'))
    A(sraw('s_cmp_ge_u32 s2, 72'))
    A(sraw('s_cselect_b32 s30, 1, 0'))
    A(sraw('s_mul_i32 s31, s30, 72'))
    A(sraw('s_sub_u32 s31, s2, s31'))
    A(sraw('s_mul_i32 s32, s31, 43'))
    A(sraw('s_lshr_b32 s32, s32, 8'))
    A(sraw('s_mul_i32 s33, s32, 6'))
    A(sraw('s_sub_u32 s33, s31, s33'))
    A(sraw('s_mul_i32 s34, s32, 11'))
    A(sraw('s_lshr_b32 s34, s34, 5'))
    A(sraw('s_mul_i32 s35, s34, 3'))
    A(sraw('s_sub_u32 s35, s32, s35'))
    A(sraw('s_add_u32 s36, s35, 2'))
    A(sraw('s_sub_u32 s37, s36, 3'))
    A(sraw('s_cmp_ge_u32 s36, 3'))
    A(sraw('s_cselect_b32 s36, s37, s36'))
    A(sraw('s_and_b32 s37, s34, 1'))
    A(sraw('s_cmp_eq_u32 s37, 1'))
    A(sraw('s_cselect_b32 s36, s36, s35'))
    A(sraw('s_mul_i32 s38, s34, 36864'))
    A(sraw('s_mul_i32 s39, s30, 18'))
    A(sraw('s_mul_i32 s40, s36, 6'))
    A(sraw('s_add_u32 s39, s39, s40'))
    A(sraw('s_add_u32 s39, s39, s33'))
    A(sraw('s_lshl_b32 s39, s39, 10'))
    A(sraw('s_add_u32 s38, s38, s39'))
    A(sraw('s_lshr_b32 s41, s32, 1'))
    A(sraw('s_lshl_b32 s41, s41, 5'))
    A(sraw('s_and_b32 s42, s32, 1'))
    A(sraw('s_lshl_b32 s42, s42, 2'))
    A(sraw('s_add_u32 s41, s41, s42'))
    A(sraw('s_lshl_b32 s42, s33, 5'))
    A(sraw('s_mul_i32 s43, s30, 768'))
    A(valu('v_and_b32', 'v1', 15, 'v0'))
    A(valu('v_lshrrev_b32', 'v2', 4, 'v0'))
    A(valu('v_lshrrev_b32', 'v3', 2, 'v1'))
    A(valu('v_lshlrev_b32', 'v3', 3, 'v3'))
    A(valu('v_and_b32', 'v4', 3, 'v1'))
    A(valu('v_add_u32', 'v3', 'v3', 'v4'))
    A(valu('v_lshlrev_b32', 'v5', 4, 'v2'))
    A(sraw('s_movk_i32 s44, 1152', wr=['s44']))
    A(valu('v_add_u32', 'v6', 's42', 'v3'))
    A(valu('v_mul_lo_u32', 'v6', 'v6', 's44'))
    A(valu('v_add_u32', 'v6', 'v6', 'v5'))
    A(valu('v_add_u32', 'v6', 's43', 'v6'))
    A(valu('v_add_u32', 'v7', 4 * 1152, 'v6'))
    A(valu('v_add_u32', 'v8', 's41', 'v3'))
    A(valu('v_lshlrev_b32', 'v10', 4, 'v0'))
    A(sraw('s_waitcnt lgkmcnt(0)'))
    A(sraw('s_mov_b32 s12, s4')); A(sraw('s_mov_b32 s13, s5')); A(sraw('s_mov_b32 s14, 221184')); A(sraw('s_mov_b32 s15, 0x00020000'))
    A(sraw('s_mov_b32 s16, s6')); A(sraw('s_mov_b32 s17, s7')); A(sraw('s_mov_b32 s18, 73728')); A(sraw('s_mov_b32 s19, 0x00020000'))
    A(sraw('s_mov_b32 s20, s8')); A(sraw('s_mov_b32 s21, s9')); A(sraw('s_mov_b32 s22, 147456')); A(sraw('s_mov_b32 s23, 0x00020000'))
    for kk in range(6):
        A(bload(R('v', 16 + 4 * kk, 4), 'v6', 's[12:15]', 0, kk * 64))
        A(bload(R('v', 40 + 4 * kk, 4), 'v7', 's[12:15]', 0, kk * 64))
    A(sraw('s_cmp_eq_u32 s30, 1'))
    A(sraw('s_cbranch_scc1 L_fold_wb'))
    pre = finalize(L)
    L = []; A = L.append
    A(valu('v_mul_lo_u32', 'v9', 'v8', 's44'))
    A(valu('v_add_u32', 'v9', 'v9', 'v5'))
    for kk in range(6):
        A(bload(R('v', 64 + 4 * kk, 4), 'v9', 's[12:15]', 0, 384 + kk * 64))
    A(sraw('s_mov_b32 s45, %s' % SC_HEX, wr=['s45']))
    A(sraw('s_branch L_fold_mm'))
    m0 = finalize(L)
    L = []; A = L.append
    A(label('L_fold_wb'))
    A(valu('v_mul_u32_u24', 'v9', 8 * 384, 'v2'))
    A(valu('v_lshlrev_b32', 'v11', 1, 'v8'))
    A(valu('v_add_u32', 'v9', 'v9', 'v11'))
    for kk in range(6):
        A(sraw('s_mov_b32 s46, %d' % (kk * 32 * 384), wr=['s46']))
        for jj in range(8):
            A(bload(R('v', 104 + 8 * kk + jj), 'v9', 's[16:19]', 's46', jj * 384, op='buffer_load_ushort'))
    A(sraw('s_mov_b32 s45, 1.0', wr=['s45']))
    A(wait(vm=0))
    for kk in range(6):
        for jj in range(4):
            A(valu('v_lshl_or_b32', f'v{64 + 4 * kk + jj}', f'v{104 + 8 * kk + 2 * jj + 1}', 16, f'v{104 + 8 * kk + 2 * jj}'))
    A(nop(1))
    m1 = finalize(L)
    L = []; A = L.append
    A(label('L_fold_mm'))
    A(wait(vm=0))
    for kk in range(6):
        A(mfma('v[88:91]', R('v', 16 + 4 * kk, 4), R('v', 64 + 4 * kk, 4), 'v[88:91]' if kk else None))
        A(mfma('v[92:95]', R('v', 40 + 4 * kk, 4), R('v', 64 + 4 * kk, 4), 'v[92:95]' if kk else None))
    for r in range(8):
        A(valu('v_mul_f32', f'v{88+r}', 's45', f'v{88+r}'))
    for r in range(4):
        A(valu('v_cvt_pk_bf16_f32', f'v{96+r}', f'v{88+2*r}', f'v{89+2*r}'))
    A(bstore('v[96:99]', 'v10', 's[20:23]', 's38', 0))
    A(label('L_fold_done'))
    A(sraw('s_endpgm'))
    mm = finalize(L)
    return pre + m0 + m1 + mm

XSLOT = 24576
TBASE = 3 * XSLOT
VBASE0 = 4 * XSLOT
VBASE1 = 5 * XSLOT
LDS_BYTES = 6 * XSLOT

def WA(ct, s): return R('a', (ct * 6 + s) * 4, 4)
def WB(ct, s): return R('a', 72 + (ct * 6 + s) * 4, 4)
def XF(tt, s): return R('a', 144 + (tt * 6 + s) * 4, 4)

class Alloc:
    def __init__(self, start): self.n = start
    def get(self, n, align=1):
        self.n = (self.n + align - 1) // align * align
        b = self.n; self.n += n; return b
al = Alloc(1)
vXe, vXo, vXec, vXoc = [al.get(1) for _ in range(4)]
vDma = [al.get(1) for _ in range(6)]
vTp, vTs, vTr, vVw, vVr, vVwc, vVrc, vOut = [al.get(1) for _ in range(8)]
vtmp = [al.get(1) for _ in range(8)]
TVacc = [al.get(24, 4) for _ in range(2)]
Tcv = [al.get(8, 4) for _ in range(2)]
Vcv = [al.get(12, 4) for _ in range(2)]
TF = al.get(24, 4)
Sacc = al.get(16, 4)
PF = al.get(8, 4)
NVF = 8
VF = al.get(4 * NVF, 4)
Oacc = al.get(16, 4)
Ocv = al.get(8, 4)
NV = al.n
assert NV <= 256, NV

sX, sO, sW = 's[4:7]', 's[8:11]', 's[12:15]'
sWave, sN, sDmaOff, sStOff, sXslot, sVw, sVr, sM0a, sM0b = ['s%d' % k for k in range(16, 25)]
sWg = 's25'
sT = ['s%d' % k for k in range(26, 40)]

def v(n): return f'v{n}'

def win_base(dst, widx, t0, t1):
    return [salu('s_mul_i32', t0, widx, 43691),
            salu('s_lshr_b32', t0, t0, 21),
            salu('s_mul_i32', t1, t0, 48),
            salu('s_sub_u32', t1, widx, t1),
            salu('s_mul_i32', t0, t0, 8 * ROWB),
            salu('s_mul_i32', t1, t1, 3072),
            salu('s_add_u32', dst, t0, t1)]

def dma_list(soff):
    L = [salu('s_mov_b32', 'm0', sM0a)]
    for dd in range(3): L.append(bdma(v(vDma[dd]), sX, soff, dd * 1024, flags=LDFLAGS))
    L.append(salu('s_mov_b32', 'm0', sM0b))
    for dd in range(3): L.append(bdma(v(vDma[3 + dd]), sX, soff, dd * 1024, flags=LDFLAGS))
    return L

LDFLAGS = ''
STFLAGS = ''

def xf_reads(tt):
    return [ds_read(XF(tt, s), v(vXoc if s & 1 else vXec), tt * 6144 + 128 * (s >> 1)) for s in range(6)]

def a_mfmas(tt):
    base = TVacc[tt & 1]
    L = []
    for s in range(6):
        for ct in range(3):
            d = R('v', base + 4 * ct, 4)
            L.append(mfma(d, WA(ct, s), XF(tt, s), d if s else None))
        for ct in range(3):
            d = R('v', base + 12 + 4 * ct, 4)
            L.append(mfma(d, XF(tt, s), WB(ct, s), d if s else None))
    return L

def a_cvt_write(tt):
    base = TVacc[tt & 1]; tc = Tcv[tt & 1]; vc = Vcv[(tt >> 1) & 1]
    L = []
    for ct in range(3):
        for h in range(2):
            L.append(valu('v_cvt_pk_bf16_f32', v(tc + 2 * ct + h), v(base + 4 * ct + 2 * h), v(base + 4 * ct + 2 * h + 1)))
        if ct == 1: L.append(ds_write(v(vTp), R('v', tc, 4), tt * 6144, 4))
        if ct == 2: L.append(ds_write(v(vTs), R('v', tc + 4, 2), tt * 6144, 2))
    for ct in range(3):
        for h in range(2):
            L.append(valu('v_cvt_pk_bf16_f32', v(vc + 4 * ct + 2 * (tt & 1) + h),
                          v(base + 12 + 4 * ct + 2 * h), v(base + 12 + 4 * ct + 2 * h + 1)))
        if tt & 1:
            L.append(ds_write(v(vVwc), R('v', vc + 4 * ct, 4), ct * 2048 + (tt >> 1) * 1024, 4))
    return L

def g2_mfmas():
    L = []
    for kt in range(4):
        d = R('v', Sacc + 4 * kt, 4)
        for s in range(6):
            L.append(mfma(d, XF(kt, s), R('v', TF + 4 * s, 4), d if s else None))
    return L

def softmax():
    S = [v(Sacc + k) for k in range(16)]
    m, t, sm, t2 = v(vtmp[0]), v(vtmp[1]), v(vtmp[2]), v(vtmp[3])
    L = []
    L.append(valu('v_max3_f32', m, S[0], S[1], S[2]))
    L.append(valu('v_max3_f32', t, S[3], S[4], S[5]))
    L.append(valu('v_max3_f32', m, m, S[6], S[7]))
    L.append(valu('v_max3_f32', t, t, S[8], S[9]))
    L.append(valu('v_max3_f32', m, m, S[10], S[11]))
    L.append(valu('v_max3_f32', t, t, S[12], S[13]))
    L.append(valu('v_max3_f32', m, m, S[14], S[15]))
    L.append(valu('v_max_f32', m, m, t))
    L.append(valu('v_mov_b32', t, m))
    L.append(permswap('v_permlane32_swap_b32', m, t))
    L.append(valu('v_max_f32', m, m, t))
    L.append(valu('v_mov_b32', t, m))
    L.append(permswap('v_permlane16_swap_b32', m, t))
    L.append(valu('v_max_f32', m, m, t))
    for k in range(16):
        L.append(valu('v_sub_f32', S[k], S[k], m))
    for k in range(16):
        L.append(trans('v_exp_f32', S[k], S[k]))
    L.append(valu('v_add_f32', sm, S[0], S[1]))
    L.append(valu('v_add_f32', t2, S[2], S[3]))
    for k in range(4, 16, 2):
        L.append(valu('v_add_f32', sm, sm, S[k]))
        L.append(valu('v_add_f32', t2, t2, S[k + 1]))
    L.append(valu('v_add_f32', sm, sm, t2))
    L.append(valu('v_mov_b32', t, sm))
    L.append(permswap('v_permlane32_swap_b32', sm, t))
    L.append(valu('v_add_f32', sm, sm, t))
    L.append(valu('v_mov_b32', t, sm))
    L.append(permswap('v_permlane16_swap_b32', sm, t))
    L.append(valu('v_add_f32', sm, sm, t))
    L.append(trans('v_rcp_f32', sm, sm))
    for k in range(16):
        L.append(valu('v_mul_f32', S[k], S[k], sm))
    for k in range(8):
        L.append(valu('v_cvt_pk_bf16_f32', v(PF + k), S[2 * k], S[2 * k + 1]))
    return L

def vf_read(idx):
    tau, s2 = idx >> 1, idx & 1
    w, ct = tau_to_wct(tau)
    phi = (w * 3 + ct) * 2 + s2
    return ds_read(R('v', VF + 4 * (idx % NVF), 4), v(vVrc), phi * 1024)

def g4_mfmas():
    L = []
    for tau in range(12):
        e = tau >> 1
        d = R('v', Oacc + 8 * (e & 1) + 4 * (tau & 1), 4)
        for s2 in range(2):
            idx = tau * 2 + s2
            L.append(mfma(d, R('v', VF + 4 * (idx % NVF), 4), R('v', PF + 4 * s2, 4), d if s2 else None))
    return L

def o_cvt_store(e):
    ob = Oacc + 8 * (e & 1); oc = Ocv + 4 * (e & 1)
    L = [valu('v_cvt_pk_bf16_f32', v(oc + k), v(ob + 2 * k), v(ob + 2 * k + 1)) for k in range(4)]
    L.append(bstore(R('v', oc, 4), v(vOut), sO, sStOff, 64 * e, flags=STFLAGS))
    return L

def check_dataflow(canon, merged):
    assert len(canon) == len(merged) and set(map(id, canon)) == set(map(id, merged)), (len(canon), len(merged))
    def producers(seq):
        lw = {}; res = {}
        for i in seq:
            res[id(i)] = tuple(lw.get(r) for r in i.rd)
            for r in i.wr: lw[r] = id(i)
        return res, lw
    p1, f1 = producers(canon); p2, f2 = producers(merged)
    for i in canon:
        assert p1[id(i)] == p2[id(i)], ('dataflow mismatch', i.text)
    assert f1 == f2, 'final writers mismatch'

def iteration(doB, doA):
    pre = []
    if doA:
        pre += [valu('v_add_u32', v(vXec), sXslot, v(vXe)), valu('v_add_u32', v(vXoc), sXslot, v(vXo)),
                valu('v_add_u32', v(vVwc), sVw, v(vVw))]
    if doB:
        pre += [valu('v_add_u32', v(vVrc), sVr, v(vVr))]
        pre += [ds_read(R('v', TF + 4 * s, 4), v(vTr), s * 1024) for s in range(6)]
    g2 = g2_mfmas() if doB else []
    sm = softmax() if doB else []
    g4 = g4_mfmas() if doB else []
    vfr = [vf_read(idx) for idx in range(24)] if doB else []
    ost = [o_cvt_store(e) for e in range(6)] if doB else []
    xfr = [xf_reads(tt) for tt in range(4)] if doA else []
    am = [a_mfmas(tt) for tt in range(4)] if doA else []
    acw = [a_cvt_write(tt) for tt in range(4)] if doA else []
    b2 = ([wait(lgkm=0), barrier()] + dma_list(sDmaOff)) if doA else []
    canon = pre + g2 + [x for l in xfr for x in l] + sm
    if doB:
        for idx in range(24):
            canon += [vfr[idx], g4[idx]]
            if idx % 4 == 3: canon += ost[idx // 4]
    canon += b2
    if doA:
        for tt in range(4): canon += am[tt] + acw[tt]
    nG2 = len(g2)
    INF = 10**9
    if doA:
        mf = g2 + [x for l in am for x in l] + g4
        g40 = nG2 + 144
        fill = [[(-1, x, INF) for x in pre]]
        fill.append([((6 * tt + 5) if doB else -1, x, nG2 + 36 * tt) for tt in range(4) for x in xfr[tt]])
        fill.append([(nG2 + 12, x, nG2 + 30) for x in b2])
        if doB:
            fill.append([((g40 - 2 * NVF + idx) if idx < NVF else (g40 + idx - NVF), vfr[idx], g40 + idx) for idx in range(24)])
            fill.append([(g40 + 4 * e + 5, x, g40 + 4 * e + 8) for e in range(6) for x in ost[e]])
        fill.append([(nG2 + 36 * (tt + 1) + 1, x, nG2 + 36 * (tt + 2)) for tt in range(4) for x in acw[tt]])
        if doB:
            fill.append([(nG2 + 1, x, g40 - 2) for x in sm])
        out = merge(mf, fill, per=2)
        bi = out.index(b2[1])
        for tt in range(4):
            for x in xfr[tt]: assert out.index(x) < bi
            for x in acw[tt]: assert out.index(x) > bi
        for x in pre: assert out.index(x) < bi
    else:
        out = merge(g2, [[(-1, x, INF) for x in pre], [(8, x, INF) for x in vfr[:NVF]]], per=2) + sm
        out += merge(g4, [[(idx - NVF, vfr[idx], idx) for idx in range(NVF, 24)],
                          [(4 * e + 5, x, 4 * e + 8) for e in range(6) for x in ost[e]]], per=2)
    check_dataflow(canon, out)
    return out

def gen_main():
    L = []; A = L.append
    A(sraw('s_cmp_ge_u32 s2, 256'))
    A(sraw('s_cbranch_scc1 L_main_done'))
    A(sraw('s_load_dwordx2 s[26:27], s[0:1], 0'))
    A(sraw('s_load_dwordx2 s[28:29], s[0:1], 24'))
    A(sraw('s_load_dwordx2 s[30:31], s[0:1], 40'))
    A(salu('s_mov_b32', sWg, 's2'))
    t = [v(x) for x in vtmp]
    lane, i_, g_, f_ = t[0], t[1], t[2], t[3]
    A(valu('v_lshrrev_b32', t[4], 6, 'v0'))
    A(valu('v_and_b32', lane, 63, 'v0'))
    A(Ins('v_readfirstlane_b32 %s, %s' % (sWave, t[4]), 'valu', [t[4]], [sWave]))
    A(valu('v_and_b32', i_, 15, lane))
    A(valu('v_lshrrev_b32', g_, 4, lane))
    A(valu('v_lshrrev_b32', f_, 1, i_))
    A(valu('v_mul_u32_u24', t[4], 384, i_))
    A(valu('v_xor_b32', t[5], g_, f_))
    A(valu('v_lshlrev_b32', t[6], 4, t[5]))
    A(valu('v_add_u32', v(vXe), t[4], t[6]))
    A(valu('v_xor_b32', t[5], 4, t[5]))
    A(valu('v_lshlrev_b32', t[6], 4, t[5]))
    A(valu('v_add_u32', v(vXo), t[4], t[6]))
    A(salu('s_mul_i32', sT[6], sWave, 2 * ROWB))
    A(valu('v_lshrrev_b32', t[4], 3, i_))
    A(salu('s_mov_b32', sT[7], ROWB))
    A(valu('v_mul_lo_u32', t[4], t[4], sT[7]))
    A(valu('v_and_b32', t[5], 7, i_))
    A(valu('v_mul_u32_u24', t[5], 384, t[5]))
    A(valu('v_lshlrev_b32', t[6], 4, g_))
    A(valu('v_add3_u32', t[4], t[4], t[5], t[6]))
    A(valu('v_add_u32', v(vOut), sT[6], t[4]))
    for rr in range(2):
        for dd in range(3):
            A(valu('v_add_u32', t[4], 64 * dd, lane))
            A(valu('v_mul_u32_u24', t[5], 171, t[4]))
            A(valu('v_lshrrev_b32', t[5], 12, t[5]))
            A(valu('v_mul_u32_u24', t[6], 24, t[5]))
            A(valu('v_sub_u32', t[6], t[4], t[6]))
            A(valu('v_lshrrev_b32', t[7], 1, t[5]))
            A(valu('v_add_u32', t[7], 4 * rr, t[7]))
            A(valu('v_xor_b32', t[6], t[6], t[7]))
            A(valu('v_lshlrev_b32', t[6], 4, t[6]))
            A(valu('v_mul_u32_u24', t[5], 384, t[5]))
            A(valu('v_add_u32', t[5], t[5], t[6]))
            A(valu('v_add_u32', t[5], rr * ROWB - dd * 1024 + (1 << 32) * (rr * ROWB - dd * 1024 < 0), t[5]))
            A(valu('v_add_u32', v(vDma[3 * rr + dd]), sT[6], t[5]))
    A(valu('v_lshlrev_b32', t[4], 4, lane))
    A(salu('s_mul_i32', sT[8], sWave, 3))
    A(salu('s_add_u32', sT[8], sT[8], 1))
    A(salu('s_lshr_b32', sT[8], sT[8], 1))
    A(salu('s_lshl_b32', sT[8], sT[8], 10))
    A(salu('s_add_u32', sT[8], sT[8], TBASE))
    A(valu('v_add_u32', v(vTp), sT[8], t[4]))
    A(salu('s_lshr_b32', sT[8], sWave, 1))
    A(salu('s_mul_i32', sT[8], sT[8], 3072))
    A(salu('s_and_b32', sT[9], sWave, 1))
    A(salu('s_lshl_b32', sT[9], sT[9], 3))
    A(salu('s_add_u32', sT[8], sT[8], sT[9]))
    A(salu('s_add_u32', sT[8], sT[8], TBASE + 1024))
    A(valu('v_add_u32', v(vTs), sT[8], t[4]))
    A(salu('s_mul_i32', sT[8], sWave, 6144))
    A(valu('v_add_u32', v(vVw), sT[8], t[4]))
    A(valu('v_add_u32', v(vTr), TBASE, v(vVw)))
    A(valu('v_mov_b32', v(vVr), t[4]))
    A(sraw('s_waitcnt lgkmcnt(0)'))
    for base, src, nb in ((4, 26, XBYTES), (8, 28, XBYTES), (12, 30, 147456)):
        A(salu('s_mov_b32', f's{base}', f's{src}')); A(salu('s_mov_b32', f's{base+1}', f's{src+1}'))
        A(salu('s_mov_b32', f's{base+2}', nb)); A(salu('s_mov_b32', f's{base+3}', '0x00020000'))
    A(salu('s_mov_b32', sM0a, sT[8])); A(salu('s_add_u32', sM0b, sT[8], 3072))
    L += win_base(sStOff, sWg, sT[0], sT[1])
    L += dma_list(sStOff)
    A(salu('s_mul_i32', sT[9], sWave, 36864))
    for f in range(36):
        if f % 4 == 0 and f: A(salu('s_add_u32', sT[9], sT[9], 4096))
        A(bload(R('a', 4 * f, 4), t[4], sW, sT[9], (f % 4) * 1024))
    for k in (1, 2):
        A(salu('s_add_u32', sT[2], sWg, 256 * k))
        L += win_base(sDmaOff, sT[2], sT[0], sT[1])
        A(salu('s_add_u32', sM0a, sT[8], k * XSLOT)); A(salu('s_add_u32', sM0b, sT[8], k * XSLOT + 3072))
        L += dma_list(sDmaOff)
    A(salu('s_mov_b32', sXslot, 0))
    A(salu('s_mov_b32', sVw, VBASE0))
    A(salu('s_mov_b32', sVr, VBASE1))
    A(salu('s_mov_b32', sM0a, sT[8])); A(salu('s_add_u32', sM0b, sT[8], 3072))
    A(salu('s_add_u32', sT[2], sWg, 256 * 3))
    L += win_base(sDmaOff, sT[2], sT[0], sT[1])
    A(salu('s_mov_b32', sN, 0))
    A(wait(vm=12))
    A(barrier())
    L += iteration(False, True)
    A(wait(vm=12, lgkm=0))
    pro = finalize(L)

    def advance():
        S = []
        S.append(salu('s_add_u32', sXslot, sXslot, XSLOT))
        S.append(sraw('s_cmp_ge_u32 %s, %d' % (sXslot, 3 * XSLOT), rd=[sXslot]))
        S.append(salu('s_cselect_b32', sXslot, 0, sXslot))
        S.append(salu('s_add_u32', sM0a, sXslot, sT[8]))
        S.append(salu('s_add_u32', sM0b, sM0a, 3072))
        S.append(salu('s_mov_b32', sT[3], sVw)); S.append(salu('s_mov_b32', sVw, sVr)); S.append(salu('s_mov_b32', sVr, sT[3]))
        S.append(salu('s_lshl_b32', sT[2], sN, 8))
        S.append(salu('s_add_u32', sT[2], sT[2], sWg))
        S += win_base(sStOff, sT[2], sT[0], sT[1])
        S.append(salu('s_add_u32', sT[2], sT[2], 1024))
        S += win_base(sDmaOff, sT[2], sT[0], sT[1])
        S.append(sraw('s_cmp_ge_u32 %s, 5' % sN, rd=[sN]))
        S.append(salu('s_cselect_b32', sDmaOff, '0x80000000', sDmaOff))
        return S

    L = []; A = L.append
    A(label('L_loop'))
    L += advance()
    A(barrier())
    L += iteration(True, True)
    A(salu('s_add_u32', sN, sN, 1))
    A(sraw('s_cmp_ge_u32 %s, 3' % sN, rd=[sN]))
    A(sraw('s_cbranch_scc1 L_w30'))
    A(sraw('s_cmp_eq_u32 %s, 2' % sN, rd=[sN]))
    A(sraw('s_cbranch_scc1 L_w24'))
    A(sraw('s_waitcnt vmcnt(18)'))
    A(label('L_w24'))
    A(sraw('s_waitcnt vmcnt(24)'))
    A(label('L_w30'))
    A(wait(vm=30, lgkm=0))
    A(sraw('s_cmp_lt_u32 %s, 8' % sN, rd=[sN]))
    A(sraw('s_cbranch_scc1 L_loop'))
    body = finalize(L)
    L = []; A = L.append
    L += advance()
    A(barrier())
    L += iteration(True, False)
    A(label('L_main_done'))
    A(sraw('s_endpgm'))
    epi = finalize(L)
    return pro + body + epi

def kd(name, nv, ns, acc):
    return f'''.amdhsa_kernel {name}
  .amdhsa_next_free_vgpr {nv}
  .amdhsa_next_free_sgpr {ns}
  .amdhsa_accum_offset {acc}
  .amdhsa_group_segment_fixed_size 0
  .amdhsa_kernarg_size 48
  .amdhsa_user_sgpr_count 2
  .amdhsa_user_sgpr_kernarg_segment_ptr 1
  .amdhsa_system_sgpr_workgroup_id_x 1
.end_amdhsa_kernel
'''

def build():
    hdr = f'''; Swin window attention (8x8 windows, C=192), generated by gen.py
; @launch kernel=swin_fold_kernel grid=(144,1,1) block=(64,1,1) lds=0
; @launch kernel={KN}_kernel grid=(256,1,1) block=(256,1,1) lds={LDS_BYTES}
.amdgcn_target "amdgcn-amd-amdhsa--gfx950"
.text
'''
    s = hdr
    s += f'.globl swin_fold_kernel\n.p2align 8\n.type swin_fold_kernel,@function\nswin_fold_kernel:\n'
    s += render(gen_fold())
    s += f'.globl {KN}_kernel\n.p2align 8\n.type {KN}_kernel,@function\n{KN}_kernel:\n'
    s += render(gen_main())
    s += '.section .rodata,"a"\n.p2align 6\n'
    s += kd('swin_fold_kernel', 152, 48, 152)
    s += '.p2align 6\n'
    s += kd(f'{KN}_kernel', 496, 48, 256)
    return s

if __name__ == '__main__':
    out = sys.argv[1] if len(sys.argv) > 1 else 'k1.s'
    for a in sys.argv[2:]:
        if a == 'ntld': LDFLAGS = ' nt'
        if a == 'ntst': STFLAGS = ' nt'
    open(out, 'w').write(build())
    print('VGPRs used', NV)
```
